```python
import torch

def _softmax(x, axis=-1):
    return torch.softmax(x, dim=axis)
def _gelu(x):
    return torch.nn.functional.gelu(x, approximate="tanh")
def _silu(x):
    return torch.nn.functional.silu(x)
def _sigmoid(x):
    return torch.sigmoid(x)
def _layernorm(x, axis=-1, eps=1e-5):
    m = x.mean(dim=axis, keepdim=True)
    v = x.var(dim=axis, keepdim=True, unbiased=False)
    return (x - m) / torch.sqrt(v + eps)
def _scatter_add(tgt, idx, src, axis=0):
    return tgt.clone().index_add_(axis, idx, src)
def _segment_sum(src, seg, n):
    out = torch.zeros((n,) + src.shape[1:], dtype=src.dtype)
    return out.index_add_(0, seg, src)
def _pad(x, pw):
    flat = tuple(v for pair in reversed(pw) for v in pair)
    return torch.nn.functional.pad(x, flat)

kernel_name = 'recurrent_scan__sliding_block_cached__mixer_token_mlp__decode'

def setup_inputs():

    _w = (lambda a: (lambda t: t.to(torch.bfloat16) if t.is_floating_point() else t)(torch.as_tensor(a)))
    def _A_setup():
        B, Sq, D = 1, 1, 512
        Hq, Hkv, Sk, Dh = 32, 8, 32768, 128
        assert Hq % Hkv == 0, (Hq, Hkv)
        return {
            "x": _w((lambda *s: torch.randn(*s, dtype=torch.bfloat16) * 0.4)(B, Sq, D)),
            "k_cache": _w((lambda *s: torch.randn(*s, dtype=torch.bfloat16) * 1.6)(B, Hkv, Sk, Dh)),
            "v_cache": _w((lambda *s: torch.randn(*s, dtype=torch.bfloat16) * 1.6)(B, Hkv, Sk, Dh)),
            "wq": _w((lambda *s: torch.randn(*s, dtype=torch.bfloat16) * 1.6)(D, Hq * Dh) * (D ** -0.5)),
            "wo": _w((lambda *s: torch.randn(*s, dtype=torch.bfloat16) * 1.6)(Hq * Dh, D) * ((Hq * Dh) ** -0.5)),
        }
    _A_in = _A_setup()

    def _B_setup():
        B, S, D, F = 1, 1, 512, 1792
        return {
            "x": _w((lambda *s: torch.randn(*s, dtype=torch.bfloat16) * 0.4)(B, S, D)),
            "w1": _w((lambda *s: torch.randn(*s, dtype=torch.bfloat16) * 1.6)(S, F) * (S ** -0.5)),
            "b1": _w((lambda *s: torch.randn(*s, dtype=torch.bfloat16) * 1.6)(F) * 0.02),
            "w2": _w((lambda *s: torch.randn(*s, dtype=torch.bfloat16) * 1.6)(F, S) * (F ** -0.5)),
            "b2": _w((lambda *s: torch.randn(*s, dtype=torch.bfloat16) * 1.6)(S) * 0.02),
        }
    _B_in = _B_setup()

    return {
        "A_x": _A_in["x"],
        "A_k_cache": _A_in["k_cache"],
        "A_v_cache": _A_in["v_cache"],
        "A_wq": _A_in["wq"],
        "A_wo": _A_in["wo"],
        "B_x": _B_in["x"],
        "B_w1": _B_in["w1"],
        "B_b1": _B_in["b1"],
        "B_w2": _B_in["w2"],
        "B_b2": _B_in["b2"],
    }

def reference(A_x, A_k_cache, A_v_cache, A_wq, A_wo, B_x, B_w1, B_b1, B_w2, B_b2):
    def _A_ref(x, k_cache, v_cache, wq, wo):
        B, Sq, D = x.shape
        Hq, Dh = 32, 128
        Hkv, Sk = k_cache.shape[1], k_cache.shape[2]
        W = min(4096, max(256, Sk // 4))
        rep = Hq // Hkv
        q = (lambda x, *d: x.permute(*d))((x @ wq).reshape(B, Sq, Hq, Dh), 0, 2, 1, 3)
        k = (lambda x, n, axis: torch.repeat_interleave(x, n, dim=axis))(k_cache[:, :, Sk - W:, :], rep, axis=1)
        v = (lambda x, n, axis: torch.repeat_interleave(x, n, dim=axis))(v_cache[:, :, Sk - W:, :], rep, axis=1)
        scores = torch.einsum("bhqd,bhkd->bhqk", q, k) * (Dh ** -0.5)
        p = _softmax(scores, axis=-1)
        o = torch.einsum("bhqk,bhkd->bhqd", p, v)
        return (lambda x, *d: x.permute(*d))(o, 0, 2, 1, 3).reshape(B, Sq, Hq * Dh) @ wo

    def _B_ref(x, w1, b1, w2, b2):
        B, S, D = x.shape
        h = _layernorm(x, axis=-1)
        u = torch.einsum("bsd,sf->bdf", h, w1) + b1
        u = _gelu(u)
        y = torch.einsum("bdf,fs->bds", u, w2) + b2
        return (lambda x, *d: x.permute(*d))(y, 0, 2, 1)

    x = A_x
    xn = _layernorm(x, axis=-1)
    s = _A_ref(xn, A_k_cache, A_v_cache, A_wq, A_wo)
    g = _silu(_B_ref(xn, B_w1, B_b1, B_w2, B_b2))
    return x + s * g
```

```python
import re

TRANS = ("v_exp_f32", "v_log_f32", "v_rcp_f32", "v_rsq_f32", "v_sqrt_f32", "v_sin_f32", "v_cos_f32", "v_rcp_iflag_f32")

def _regs(tok):
    tok = tok.strip()
    tok = re.sub(r"^-", "", tok)
    m = re.match(r"^abs\((.*)\)$", tok)
    if m: tok = m.group(1)
    tok = tok.strip("|")
    m = re.match(r"^([vsa])\[(\d+):(\d+)\]$", tok)
    if m:
        return [(m.group(1), i) for i in range(int(m.group(2)), int(m.group(3)) + 1)]
    m = re.match(r"^([vsa])(\d+)$", tok)
    if m:
        return [(m.group(1), int(m.group(2)))]
    if tok == "vcc": return [("s", 106), ("s", 107)]
    if tok == "vcc_lo": return [("s", 106)]
    if tok == "vcc_hi": return [("s", 107)]
    if tok == "exec": return [("s", 126), ("s", 127)]
    if tok == "m0": return [("s", 124)]
    return []

class Ins:
    def __init__(self, text):
        self.text = text
        t = text.split(";")[0].strip()
        self.label = t.endswith(":")
        self.directive = t.startswith(".") or t == ""
        self.defs = []; self.uses = []
        self.kind = "none"
        self.srcC = []; self.srcAB = []
        self.storedata = []
        self.dpp = False
        if self.label or self.directive:
            return
        parts = t.split(None, 1)
        mn = parts[0]; self.mn = mn
        rest = parts[1] if len(parts) > 1 else ""
        ops = []; depth = 0; cur = ""
        for ch in rest:
            if ch in "[(": depth += 1
            if ch in "])": depth -= 1
            if ch == "," and depth == 0:
                ops.append(cur.strip()); cur = ""
            else:
                cur += ch
        if cur.strip(): ops.append(cur.strip())
        mods = ""
        if ops:
            sp = ops[-1].split(None, 1)
            ops[-1] = sp[0]
            mods = sp[1] if len(sp) > 1 else ""
        self.ops = ops; self.mods = mods
        R = [_regs(o) for o in ops]
        flat = lambda L: [x for l in L for x in l]
        if mn.startswith("v_mfma"):
            self.kind = "mfma"
            self.defs = R[0]; self.srcAB = R[1] + R[2]; self.srcC = R[3]
            self.uses = self.srcAB + self.srcC
            self.passes = 4 if "16x16" in mn else 8
            if "4x4" in mn: self.passes = 2
        elif mn.startswith("v_"):
            self.kind = "valu"
            self.dpp = ("_dpp" in mn) or any(k in mods for k in ("quad_perm", "row_", "wave_"))
            if mn.startswith("v_cmp"):
                self.defs = R[0]; self.uses = flat(R[1:])
            elif mn.startswith("v_permlane") and "swap" in mn:
                self.defs = R[0] + R[1]; self.uses = R[0] + R[1]
            elif mn.startswith("v_swap"):
                self.defs = R[0] + R[1]; self.uses = R[0] + R[1]
            elif mn.startswith(("v_fmac", "v_dot2c", "v_pk_fmac", "v_writelane")) or self.dpp:
                self.defs = R[0]; self.uses = flat(R)
            elif mn.startswith(("v_add_co", "v_sub_co", "v_addc_co", "v_subb_co", "v_div_scale")):
                self.defs = R[0] + R[1]; self.uses = flat(R[2:])
            elif mn == "v_nop":
                pass
            else:
                self.defs = R[0]; self.uses = flat(R[1:])
            if mn.startswith("v_cndmask") and len(ops) == 3:
                self.uses += _regs("vcc")
        elif mn.startswith(("buffer_", "global_")):
            self.kind = "vmem"
            if "store" in mn or ("atomic" in mn):
                if mn.startswith("buffer_"):
                    self.storedata = R[0]; self.uses = flat(R)
                else:
                    self.storedata = R[1]; self.uses = flat(R)
                if "atomic" in mn and "sc0" in mods: self.defs = R[0]
            elif mn in ("buffer_wbl2", "buffer_inv"):
                pass
            elif " lds" in (" " + mods):
                self.uses = flat(R) + _regs("m0")
            else:
                self.defs = R[0]; self.uses = flat(R[1:])
        elif mn.startswith("ds_"):
            self.kind = "ds"
            if "write" in mn or (mn.startswith(("ds_add", "ds_max", "ds_min")) and "rtn" not in mn):
                self.uses = flat(R)
            else:
                self.defs = R[0]; self.uses = flat(R[1:])
        elif mn.startswith(("s_load", "s_memtime", "s_memrealtime", "s_buffer_load", "s_atomic")):
            self.kind = "smem"
            self.defs = R[0]; self.uses = flat(R[1:])
        elif mn.startswith("s_"):
            self.kind = "salu"
            if mn in ("s_nop", "s_waitcnt", "s_barrier", "s_endpgm", "s_sleep", "s_setprio", "s_branch") or mn.startswith(("s_cbranch", "s_cmp")):
                self.uses = flat(R)
            else:
                self.defs = R[0] if R else []; self.uses = flat(R[1:])
                if "saveexec" in mn: self.defs = self.defs + _regs("exec")
        self.trans = mn.replace("_e32", "").replace("_e64", "") in TRANS
        self.dot = mn.startswith("v_dot")

    def states(self):
        if self.label or self.directive: return 0
        if self.mn == "s_nop": return int(self.ops[0], 0) + 1
        return 1

def need(p, c):
    n = 0
    pd = set(p.defs); cu = set(c.uses); cd = set(c.defs)
    pv = {r for r in pd if r[0] in "va"}; ps = {r for r in pd if r[0] == "s"}
    if p.kind == "valu":
        if c.kind == "mfma" and pv & cu: n = max(n, 2)
        if c.kind == "valu":
            if c.dpp and pv & cu: n = max(n, 2)
            if c.mn.startswith("v_permlane") and pv & cu: n = max(n, 2)
            if c.mn.startswith(("v_readlane", "v_readfirstlane")) and pv & cu: n = max(n, 1)
            if p.trans and pv & cu: n = max(n, 1)
            if ps & cu:
                n = max(n, 2)
                if c.mn.startswith(("v_readlane", "v_writelane")): n = max(n, 4)
            if p.dot and (pv & (cu | cd)):
                if not (c.mn == p.mn and c.mn.startswith("v_dot2c")) : n = max(n, 3)
            if ("sel" in p.mods) and pv & (cu | cd): n = max(n, 1)
        if c.kind in ("vmem", "ds") and p.trans and pv & cu: n = max(n, 1)
        if c.kind in ("vmem", "ds", "mfma") and p.dot and pv & cu: n = max(n, 3)
        if c.kind == "vmem" and ps & cu: n = max(n, 5)
        if ("s", 126) in ps:
            if c.kind == "valu" and c.dpp: n = max(n, 5)
            if c.kind == "mfma": n = max(n, 4)
            if c.kind == "valu" and c.mn.startswith(("v_readlane", "v_readfirstlane", "v_writelane", "v_permlane")): n = max(n, 4)
    if p.kind == "mfma":
        tbl = {2: (5, 4, 1), 4: (8, 6, 3), 8: (12, 10, 7), 16: (20, 18, 15)}[p.passes]
        if c.kind == "mfma":
            if pv & set(c.srcAB): n = max(n, tbl[0])
            if pv & set(c.srcC):
                if list(p.defs) == list(c.srcC) and p.passes == c.passes:
                    n = max(n, 2 if p.passes == 2 else 0)
                else:
                    n = max(n, tbl[1])
            if pv & cd and not (pv & set(c.srcC)): n = max(n, tbl[0])
        elif c.kind in ("valu", "vmem", "ds"):
            if pv & (cu | cd): n = max(n, tbl[0])
        if c.kind == "valu" and set(p.srcC) & cd: n = max(n, tbl[2])
    if p.kind == "vmem" and p.storedata and len(p.storedata) >= 3:
        if set(p.storedata) & cd: n = max(n, 2 if c.kind in ("valu", "mfma") else 1)
    if p.kind == "salu" and ("s", 124) in ps and ("s", 124) in cu and c.kind in ("vmem", "ds"): n = max(n, 1)
    return n

class Asm:
    def __init__(self):
        self.lines = []
    def __call__(self, s):
        for l in s.split("\n"):
            l = l.strip()
            if l: self.lines.append(l)
    def label(self, name): self.lines.append(name + ":")
    def finalize(self):
        ins = [Ins(l) for l in self.lines]
        out = []
        for c in ins:
            if c.label or c.directive:
                out.append(c); continue
            dist = 0; req = 0
            for p in reversed(out):
                if p.label or p.directive: continue
                if p.mn in ("s_branch", "s_endpgm"): break
                nd = need(p, c)
                if nd > dist: req = max(req, nd - dist)
                dist += p.states()
                if dist > 24: break
            while req > 0:
                k = min(req, 16)
                out.append(Ins(f"s_nop {k-1}"))
                req -= k
            out.append(c)
        labels = {x.text[:-1]: i for i, x in enumerate(out) if x.label}
        for i, b in enumerate(out):
            if b.label or b.directive: continue
            if b.mn.startswith(("s_cbranch", "s_branch")):
                tgt = labels.get(b.ops[0])
                if tgt is None: continue
                pre = []; d = 1
                for p in reversed(out[:i]):
                    if p.label or p.directive: continue
                    if p.mn in ("s_branch", "s_endpgm"): break
                    pre.append((p, d)); d += p.states()
                    if d > 24: break
                d2 = 0
                for c in out[tgt:]:
                    if c.label or c.directive: continue
                    for p, dp in pre:
                        nd = need(p, c)
                        if nd > dp + d2:
                            raise SystemExit(f"HAZARD across branch {b.text}: {p.text} -> {c.text} needs {nd}, has {dp+d2}")
                    d2 += c.states()
                    if d2 > 24 or c.mn in ("s_branch", "s_endpgm"): break
        return "\n".join(("" if (x.label or x.directive) else "    ") + x.text for x in out) + "\n"
```

```python
import sys, struct, math
sys.path.insert(0, "gen")
from asmkit import Asm

KNAME = "recurrent_scan__sliding_block_cached__mixer_token_mlp__decode_kernel"
HEADER = open("recurrent_scan__sliding_block_cached__mixer_token_mlp__decode.s.ref").read().split("; Override launch")[0]

def f2u(x): return struct.unpack("<I", struct.pack("<f", x))[0]
def hx(x): return "0x%08x" % (x & 0xffffffff)

LOG2E = 1.4426950408889634
SCALE = f2u(128 ** -0.5)
C0 = -2.0 * math.sqrt(2.0 / math.pi) * LOG2E
C1 = C0 * 0.044715

BD = 0x200000
WS_QA = 0x10000; WS_QB = WS_QA + BD
WS_STA = 0x30000; WS_STB = WS_STA + BD
WS_SP = 0x40000
WS_OA = 0x100000; WS_OB = WS_OA + BD
WS_TS = 0x400000
WS_SIZE = 268435456
SPIN_MAX = 100000
L_Q = 0; L_M = 1024; L_L = 1088; L_Y = 1152; L_O = 2048; L_S = 2048 + 8192
LS_STRIDE = 1040
LDS_BYTES = L_S + 4 * LS_STRIDE + 64

def gen(path, throttle=6, stamps=False, wo_pos=2, atries=16):
    A = Asm()
    nst = [0]
    def stamp(idx):
        if stamps:
            A("s_memtime s[90:91]"); A("s_waitcnt lgkmcnt(0)"); A(f"v_writelane_b32 v15, s90, {idx}")
    def srd(d, b, n):
        A(f"s_mov_b64 s[{d}:{d+1}], s[{b}:{b+1}]")
    def srd_const(d, n):
        A(f"s_mov_b32 s{d+2}, {hx(n)}"); A(f"s_mov_b32 s{d+3}, 0x00020000")
    def bf16r(dst, src):
        A(f"v_cvt_pk_bf16_f32 v{dst}, v{src}, v{src}"); A(f"v_lshlrev_b32 v{dst}, 16, v{dst}")
    def wave_sum63(v):
        for m in ("quad_perm:[1,0,3,2] row_mask:0xf bank_mask:0xf", "quad_perm:[2,3,0,1] row_mask:0xf bank_mask:0xf",
                  "row_half_mirror row_mask:0xf bank_mask:0xf", "row_mirror row_mask:0xf bank_mask:0xf",
                  "row_bcast:15 row_mask:0xa bank_mask:0xf", "row_bcast:31 row_mask:0xc bank_mask:0xf"):
            A(f"v_add_f32_dpp v{v}, v{v}, v{v} {m}")
    def unpack(lo, hi, src):
        A(f"v_lshlrev_b32 v{lo}, 16, v{src}"); A(f"v_and_b32 v{hi}, 0xffff0000, v{src}")
    def ln_stats(xf, t, sMb, sRinv, sTmp):
        A(f"v_add_f32 v{t}, v{xf}, v{xf+1}")
        for i in range(2, 8): A(f"v_add_f32 v{t}, v{t}, v{xf+i}")
        wave_sum63(t)
        A(f"v_mul_f32 v{t}, {hx(f2u(1/512))}, v{t}")
        A(f"v_readlane_b32 s{sTmp}, v{t}, 63")
        bf16r(t, t)
        A(f"v_readlane_b32 s{sMb}, v{t}, 63")
        A(f"v_subrev_f32 v{t+1}, s{sTmp}, v{xf}")
        A(f"v_mul_f32 v{t}, v{t+1}, v{t+1}")
        for i in range(1, 8):
            A(f"v_subrev_f32 v{t+1}, s{sTmp}, v{xf+i}")
            A(f"v_fmac_f32 v{t}, v{t+1}, v{t+1}")
        wave_sum63(t)
        A(f"v_mul_f32 v{t}, {hx(f2u(1/512))}, v{t}")
        bf16r(t, t)
        A(f"v_add_f32 v{t}, {hx(f2u(1e-5))}, v{t}")
        bf16r(t, t)
        A(f"v_sqrt_f32 v{t}, v{t}")
        bf16r(t, t)
        A(f"v_rcp_f32 v{t}, v{t}")
        A(f"v_readlane_b32 s{sRinv}, v{t}, 63")
    def normalize_pair(dst, a, b, sMb, sRinv):
        A(f"v_subrev_f32 v{a}, s{sMb}, v{a}"); A(f"v_subrev_f32 v{b}, s{sMb}, v{b}")
        A(f"v_cvt_pk_bf16_f32 v{dst}, v{a}, v{b}")
        unpack(a, b, dst)
        A(f"v_mul_f32 v{a}, s{sRinv}, v{a}"); A(f"v_mul_f32 v{b}, s{sRinv}, v{b}")
        A(f"v_cvt_pk_bf16_f32 v{dst}, v{a}, v{b}")
    def make_sel(base, t):
        A(f"v_and_b32 v{t}, 1, v0")
        A(f"v_cmp_eq_u32 vcc, 1, v{t}")
        A(f"v_mov_b32 v{t+1}, 0x0c0c0100"); A(f"v_mov_b32 v{t+2}, 0x01000c0c")
        A(f"v_cndmask_b32 v{t+1}, v{t+1}, v{t+2}, vcc")
        A(f"v_mov_b32 v{t}, 0x0c0c0302"); A(f"v_mov_b32 v{t+2}, 0x03020c0c")
        A(f"v_cndmask_b32 v{t+2}, v{t}, v{t+2}, vcc")
        A(f"v_bfe_u32 v{t}, v0, 1, 2")
        for d in range(4):
            A(f"v_cmp_eq_u32 vcc, {d}, v{t}")
            A(f"v_mov_b32 v{base+2*d}, 0x0c0c0c0c"); A(f"v_mov_b32 v{base+2*d+1}, 0x0c0c0c0c")
            A(f"v_cndmask_b32 v{base+2*d}, v{base+2*d}, v{t+1}, vcc")
            A(f"v_cndmask_b32 v{base+2*d+1}, v{base+2*d+1}, v{t+2}, vcc")

    A(".amdgcn_target \"amdgcn-amd-amdhsa--gfx950\"\n.text")
    A(f".globl {KNAME}\n.p2align 12\n.type {KNAME},@function")
    A.label(KNAME)
    A("s_cmp_ge_u32 s2, 256"); A("s_cbranch_scc1 L_end")
    A("s_load_dwordx16 s[8:23], s[0:1], 0")
    A("s_load_dwordx8 s[24:31], s[0:1], 64")
    A("s_load_dwordx2 s[32:33], s[0:1], 96")
    if stamps:
        A("s_memrealtime s[92:93]"); A("s_memtime s[94:95]"); A("v_mov_b32 v15, 0")
    A("v_lshrrev_b32 v1, 6, v0"); A("v_and_b32 v0, 63, v0")
    A("v_readfirstlane_b32 s3, v1")
    A("s_and_b32 s4, s2, 7"); A("s_lshr_b32 s5, s2, 3"); A("s_lshr_b32 s6, s5, 3"); A("s_and_b32 s7, s5, 7")
    srd_const(52, WS_SIZE)
    A("s_movk_i32 s59, 0x3ff")
    A("v_lshlrev_b32 v3, 4, v0")
    A("v_lshrrev_b32 v5, 3, v0")
    A("v_and_b32 v6, 7, v0")
    A("s_cmp_ge_u32 s3, 4"); A("s_cbranch_scc1 L_aux")

    srd_const(36, 67108864); srd_const(40, 67108864); srd_const(44, 4194304)
    A("s_lshl_b32 s60, s4, 23"); A("s_lshl_b32 s61, s5, 15"); A("s_add_u32 s60, s60, s61")
    A("s_lshl_b32 s61, s3, 13"); A("s_add_u32 s60, s60, s61"); A(f"s_add_u32 s60, s60, {28672*256}")
    A("s_add_u32 s61, s60, 4096")
    A("v_and_b32 v2, 3, v0"); A("v_lshlrev_b32 v2, 10, v2")
    A("v_bfe_u32 v1, v0, 2, 2"); A("v_lshl_add_u32 v2, v1, 8, v2")
    A("v_lshrrev_b32 v1, 4, v0"); A("v_lshl_add_u32 v2, v1, 4, v2")
    A("v_lshlrev_b32 v4, 10, v5"); A("v_lshl_add_u32 v4, v6, 4, v4")
    A("s_lshl_b32 s62, s4, 2"); A("s_add_u32 s62, s62, s6")
    A("s_lshl_b32 s66, s62, 14")
    A("s_lshl_b32 s62, s62, 17"); A("s_lshl_b32 s63, s3, 15"); A("s_add_u32 s62, s62, s63")
    A("s_lshl_b32 s63, s7, 7"); A("s_add_u32 s62, s62, s63")
    A("s_add_u32 s63, s62, 8192"); A("s_add_u32 s64, s62, 16384"); A("s_add_u32 s65, s62, 24576")
    A("s_waitcnt lgkmcnt(0)")
    srd(36, 10, 0); srd(40, 12, 0); srd(44, 16, 0); srd(52, 32, 0)
    A("s_load_dword s56, s[32:33], 0")
    A("s_barrier")
    stamp(0)
    KB, VB, WB, QB_, SB_, SELB = 16, 48, 80, 96, 112, 120
    n = 0
    def thr():
        nonlocal n
        if n >= throttle: A(f"s_waitcnt vmcnt({throttle-1})")
        n += 1
    for t in range(2):
        for ks in range(4):
            thr()
            r = KB + 16 * t + 4 * ks
            A(f"buffer_load_dwordx4 v[{r}:{r+3}], v2, s[36:39], s{60+t} offen offset:{ks*64} nt")
        if t == 0:
            make_sel(SELB, 8)
    for i in range(8):
        thr()
        r = VB + 4 * i
        A(f"buffer_load_dwordx4 v[{r}:{r+3}], v3, s[40:43], s{60+i//4} offen offset:{(i%4)*1024} nt")
    stamp(1)
    A("s_waitcnt lgkmcnt(0)")
    A("s_add_u32 s58, s56, 1"); A("s_and_b32 s57, s58, s59")
    for u in range(4):
        A(f"s_mov_b32 s{70+2*u}, {hx(0x000f000f << (4*u))}"); A(f"s_mov_b32 s{71+2*u}, {hx(0x000f000f << (4*u))}")
    A(f"s_mov_b32 s68, {hx(SCALE)}"); A(f"s_mov_b32 s69, {hx(f2u(LOG2E))}")
    A("s_mov_b32 s78, 0x05040100"); A("s_mov_b32 s79, 0x07060302")
    A("v_and_b32 v7, 3, v0"); A("v_lshrrev_b32 v1, 4, v0")
    A("v_lshlrev_b32 v8, 8, v7"); A("v_lshl_add_u32 v8, v1, 4, v8")
    A("s_barrier")
    stamp(2)
    for ks in range(4):
        A(f"ds_read_b128 v[{QB_+4*ks}:{QB_+4*ks+3}], v8 offset:{L_Q+ks*64}")
    A("s_waitcnt vmcnt(8)")
    for ks in range(4):
        A(f"s_waitcnt lgkmcnt({3-ks})")
        for t in range(2):
            r = KB + 16 * t + 4 * ks
            c = "0" if ks == 0 else f"v[{SB_+4*t}:{SB_+4*t+3}]"
            A(f"v_mfma_f32_16x16x32_bf16 v[{SB_+4*t}:{SB_+4*t+3}], v[{r}:{r+3}], v[{QB_+4*ks}:{QB_+4*ks+3}], {c}")
    for p in range(4):
        a, b = SB_ + 2 * p, SB_ + 2 * p + 1
        A(f"v_cvt_pk_bf16_f32 v9, v{a}, v{b}")
        unpack(a, b, 9)
        A(f"v_mul_f32 v{a}, s68, v{a}"); A(f"v_mul_f32 v{b}, s68, v{b}")
        A(f"v_cvt_pk_bf16_f32 v9, v{a}, v{b}")
        unpack(a, b, 9)
    S = SB_
    A(f"v_max3_f32 v9, v{S}, v{S+1}, v{S+2}"); A(f"v_max3_f32 v9, v9, v{S+3}, v{S+4}")
    A(f"v_max3_f32 v9, v9, v{S+5}, v{S+6}"); A(f"v_max_f32 v9, v9, v{S+7}")
    A("v_mov_b32 v10, v9"); A("v_permlane16_swap_b32 v9, v10"); A("v_max_f32 v9, v9, v10")
    A("v_mov_b32 v10, v9"); A("v_permlane32_swap_b32 v9, v10"); A("v_max_f32 v9, v9, v10")
    A("v_lshlrev_b32 v11, 4, v7")
    A("s_lshl_b32 s80, s3, 2"); A("v_add_u32 v12, s80, v11")
    A(f"ds_write_b32 v12, v9 offset:{L_M}")
    A("s_waitcnt lgkmcnt(0)"); A("s_barrier")
    A(f"ds_read_b128 v[{QB_}:{QB_+3}], v11 offset:{L_M}")
    A("s_waitcnt lgkmcnt(0)")
    A(f"v_max3_f32 v9, v{QB_}, v{QB_+1}, v{QB_+2}"); A(f"v_max_f32 v9, v9, v{QB_+3}")
    A("v_mul_f32 v9, s69, v9")
    for i in range(8):
        A(f"v_fma_f32 v{S+i}, v{S+i}, s69, -v9")
    for i in range(8):
        A(f"v_exp_f32 v{S+i}, v{S+i}")
    A(f"v_add_f32 v10, v{S}, v{S+1}")
    for i in range(2, 8): A(f"v_add_f32 v10, v10, v{S+i}")
    A("v_mov_b32 v13, v10"); A("v_permlane16_swap_b32 v10, v13"); A("v_add_f32 v10, v10, v13")
    A("v_mov_b32 v13, v10"); A("v_permlane32_swap_b32 v10, v13"); A("v_add_f32 v10, v10, v13")
    A(f"ds_write_b32 v12, v10 offset:{L_L}")
    A("s_waitcnt lgkmcnt(0)"); A("s_barrier")
    A(f"ds_read_b128 v[{QB_}:{QB_+3}], v11 offset:{L_L}")
    A("s_waitcnt lgkmcnt(0)")
    A(f"v_add_f32 v10, v{QB_}, v{QB_+1}"); A(f"v_add_f32 v13, v{QB_+2}, v{QB_+3}"); A("v_add_f32 v10, v10, v13")
    A("v_rcp_f32 v13, v10"); A("v_log_f32 v10, v10")
    for i in range(8): A(f"v_mul_f32 v{S+i}, v{S+i}, v13")
    A("v_add_f32 v10, v10, v9")
    A("v_mov_b32 v11, s58")
    for p in range(4):
        A(f"v_cvt_pk_bf16_f32 v{S+p}, v{S+2*p}, v{S+2*p+1}")
    A("s_lshl_b32 s80, s4, 10"); A("s_lshr_b32 s81, s6, 1"); A("s_lshl_b32 s81, s81, 7"); A("s_add_u32 s80, s80, s81")
    A("s_lshl_b32 s81, s7, 4"); A("s_add_u32 s80, s80, s81"); A("s_and_b32 s81, s6, 1"); A("s_lshl_b32 s81, s81, 3"); A("s_add_u32 s80, s80, s81")
    A(f"s_add_u32 s81, s80, {WS_STB}"); A(f"s_add_u32 s80, s80, {WS_STA}")
    A("v_lshlrev_b32 v12, 8, v7")
    A("s_lshl_b64 exec, 1, s3")
    A("buffer_store_dwordx2 v[10:11], v12, s[52:55], s80 offen")
    A("buffer_store_dwordx2 v[10:11], v12, s[52:55], s81 offen sc1")
    A("s_mov_b64 exec, -1")
    after_v = 2
    for u in range(4):
        for d in range(4):
            A(f"v_cndmask_b32 v{QB_+4*u+d}, 0, v{S+d}, s[{70+2*u}:{71+2*u}]")
    stamp(3)
    A("v_and_b32 v1, 31, v0"); A("s_lshr_b32 s80, s3, 1"); A("s_lshl_b32 s80, s80, 5"); A("v_add_u32 v1, s80, v1")
    A("s_and_b32 s81, s3, 1"); A("s_lshl_b32 s82, s81, 10")
    A("v_lshlrev_b32 v12, 4, v1"); A("v_add_u32 v12, s82, v12")
    A("v_and_b32 v13, 3, v1"); A("v_lshlrev_b32 v13, 14, v13")
    A("v_lshrrev_b32 v14, 4, v1"); A("v_lshl_add_u32 v13, v14, 12, v13")
    A("v_bfe_u32 v14, v1, 2, 2"); A("v_lshl_add_u32 v13, v14, 7, v13")
    A("s_lshl_b32 s82, s4, 16"); A("s_lshl_b32 s83, s6, 10"); A("s_add_u32 s82, s82, s83")
    A("s_lshl_b32 s83, s81, 9"); A("s_add_u32 s82, s82, s83"); A("s_lshl_b32 s83, s7, 4"); A("s_add_u32 s82, s82, s83")
    A(f"s_add_u32 s83, s82, {WS_OB}"); A(f"s_add_u32 s82, s82, {WS_OA}")
    A("s_lshl_b32 s84, s3, 11"); A("v_add_u32 v14, s84, v3")
    A("s_lshl_b32 s84, s3, 12"); A("s_add_u32 s66, s66, s84")
    A("s_lshl_b32 s67, s4, 10"); A("s_lshl_b32 s84, s6, 8"); A("s_add_u32 s67, s67, s84")
    A("v_lshlrev_b32 v7, 4, v6")
    VT = KB
    def wo_loads():
        for i in range(4):
            A(f"buffer_load_dwordx4 v[{WB+4*i}:{WB+4*i+3}], v4, s[44:47], s{62+i} offen nt")
    issued_wo = False
    for p in range(4):
        if p == wo_pos:
            pass
        A(f"s_waitcnt vmcnt({6-2*p+after_v})")
        if p == wo_pos and not issued_wo:
            wo_loads(); after_v += 4; issued_wo = True
        for tt in range(8):
            a = VB + 4 * (2 * p) + tt // 2; b = VB + 4 * (2 * p + 1) + tt // 2
            A(f"v_perm_b32 v{VT+4*tt+p}, v{b}, v{a}, s{78+(tt&1)}")
    stamp(4)
    for k in range(4):
        for x in range(2):
            tt = 4 * x + k
            c = "0" if k == 0 else f"v[{S+4*x}:{S+4*x+3}]"
            A(f"v_mfma_f32_16x16x32_bf16 v[{S+4*x}:{S+4*x+3}], v[{VT+4*tt}:{VT+4*tt+3}], v[{QB_+4*k}:{QB_+4*k+3}], {c}")
    if not issued_wo:
        wo_loads(); issued_wo = True
    A(f"ds_write_b128 v14, v[{S}:{S+3}] offset:{L_O}")
    A(f"ds_write_b128 v14, v[{S+4}:{S+7}] offset:{L_O+1024}")
    A("s_waitcnt lgkmcnt(0)"); A("s_barrier")
    G = VB
    for w in range(4):
        A(f"ds_read_b128 v[{G+4*w}:{G+4*w+3}], v12 offset:{L_O+w*2048}")
    A("v_mov_b32 v9, s57")
    A("s_waitcnt lgkmcnt(2)")
    for r in range(4): A(f"v_add_f32 v{G+r}, v{G+r}, v{G+4+r}")
    A("s_waitcnt lgkmcnt(0)")
    for r in range(4): A(f"v_add_f32 v{G+8+r}, v{G+8+r}, v{G+12+r}")
    for r in range(4): A(f"v_add_f32 v{G+r}, v{G+r}, v{G+8+r}")
    for r in range(4): A(f"v_bfi_b32 v{G+r}, s59, v9, v{G+r}")
    A("s_mov_b32 exec_hi, 0")
    A(f"buffer_store_dwordx4 v[{G}:{G+3}], v13, s[52:55], s82 offen")
    A(f"buffer_store_dwordx4 v[{G}:{G+3}], v13, s[52:55], s83 offen sc1")
    A("s_mov_b64 exec, -1")
    stamp(5)
    O = KB
    ST = KB + 16
    A("s_mov_b32 s85, 0")
    A(f"s_add_u32 s66, s66, {WS_OA}"); A(f"s_add_u32 s67, s67, {WS_STA}")
    A("s_mov_b32 s86, s66"); A("s_mov_b32 s87, s67")
    A.label("L_opoll")
    for i in range(4):
        A(f"buffer_load_dwordx4 v[{O+4*i}:{O+4*i+3}], v3, s[52:55], s86 offen offset:{i*1024} sc1")
    for p in range(2):
        A(f"buffer_load_dwordx4 v[{ST+4*p}:{ST+4*p+3}], v7, s[52:55], s87 offen offset:{p*128} sc1")
    A("s_add_u32 s85, s85, 1")
    A(f"s_and_b32 s88, s85, {atries-1}")
    A(f"s_cmp_eq_u32 s88, {atries-1}")
    A(f"s_cselect_b32 s88, {BD}, 0"); A("s_add_u32 s86, s66, s88"); A("s_add_u32 s87, s67, s88")
    A("s_waitcnt vmcnt(0)")
    for q in range(16): A(f"v_xor_b32 v{O+q}, s57, v{O+q}")
    A(f"v_or3_b32 v9, v{O}, v{O+1}, v{O+2}")
    for q in range(3, 15, 2): A(f"v_or3_b32 v9, v9, v{O+q}, v{O+q+1}")
    A(f"v_or_b32 v9, v9, v{O+15}")
    A("v_and_b32 v9, s59, v9")
    for q in (1, 3, 5, 7): A(f"v_xor_b32 v{ST+q}, s58, v{ST+q}")
    A(f"v_or3_b32 v9, v9, v{ST+1}, v{ST+3}"); A(f"v_or3_b32 v9, v9, v{ST+5}, v{ST+7}")
    A("v_cmp_ne_u32 vcc, 0, v9")
    A(f"s_cmp_gt_u32 s85, {SPIN_MAX}"); A("s_cbranch_scc1 L_ogo")
    A("s_cbranch_vccnz L_opoll")
    A.label("L_ogo")
    stamp(6)
    D8 = ("quad_perm:[1,0,3,2] row_mask:0xf bank_mask:0xf", "quad_perm:[2,3,0,1] row_mask:0xf bank_mask:0xf", "row_half_mirror row_mask:0xf bank_mask:0xf")
    A(f"v_max3_f32 v9, v{ST}, v{ST+2}, v{ST+4}"); A(f"v_max_f32 v9, v9, v{ST+6}")
    for m in D8: A(f"v_max_f32_dpp v9, v9, v9 {m}")
    for i in range(4): A(f"v_sub_f32 v{ST+2*i}, v{ST+2*i}, v9")
    for i in range(4): A(f"v_exp_f32 v{ST+2*i}, v{ST+2*i}")
    AC = S
    for r in range(4): A(f"v_mul_f32 v{AC+r}, v{ST}, v{O+r}")
    A(f"v_add_f32 v{AC+4}, v{ST}, v{ST+2}")
    for i in range(1, 4):
        for r in range(4): A(f"v_fmac_f32 v{AC+r}, v{ST+2*i}, v{O+4*i+r}")
    A(f"v_add_f32 v{AC+4}, v{AC+4}, v{ST+4}"); A(f"v_add_f32 v{AC+4}, v{AC+4}, v{ST+6}")
    for m in D8:
        for r in (4, 0, 1, 2, 3): A(f"v_add_f32_dpp v{AC+r}, v{AC+r}, v{AC+r} {m}")
    A(f"v_rcp_f32 v{AC+4}, v{AC+4}")
    for r in range(4): A(f"v_mul_f32 v{AC+r}, v{AC+r}, v{AC+4}")
    A(f"v_cvt_pk_bf16_f32 v10, v{AC}, v{AC+1}"); A(f"v_cvt_pk_bf16_f32 v11, v{AC+2}, v{AC+3}")
    AB = QB_
    for i in range(4):
        for d in range(4):
            A(f"v_perm_b32 v{AB+4*i+d}, v{10+i//2}, v{10+i//2}, v{SELB+2*d+(i&1)}")
    for i in range(4):
        c = "0" if i == 0 else f"v[{AC}:{AC+3}]"
        A(f"v_mfma_f32_16x16x32_bf16 v[{AC}:{AC+3}], v[{AB+4*i}:{AB+4*i+3}], v[{WB+4*i}:{WB+4*i+3}], {c}")
    A(f"s_mul_i32 s84, s3, {LS_STRIDE}"); A("v_add_u32 v14, s84, v3")
    A("v_lshrrev_b32 v1, 4, v0")
    A("s_lshl_b32 s84, s3, 2"); A("v_add_u32 v1, s84, v1")
    A("v_lshrrev_b32 v12, 1, v1"); A("v_and_b32 v1, 1, v1"); A("v_lshl_add_u32 v12, v1, 4, v12")
    A("v_lshlrev_b32 v12, 4, v12"); A("v_bfe_u32 v1, v0, 2, 2"); A("v_lshl_add_u32 v12, v1, 2, v12")
    A("v_and_b32 v1, 3, v0"); A(f"v_mul_u32_u24 v1, {LS_STRIDE}, v1"); A("v_add_u32 v12, v12, v1")
    A(f"v_add_u32 v12, {L_S}, v12")
    A("v_lshrrev_b32 v13, 2, v0"); A("v_lshlrev_b32 v13, 3, v13")
    A("s_lshl_b32 s84, s4, 2"); A("s_add_u32 s84, s84, s6"); A("s_lshl_b32 s84, s84, 12")
    A("s_lshl_b32 s88, s7, 9"); A("s_add_u32 s84, s84, s88"); A("s_lshl_b32 s88, s3, 7"); A("s_add_u32 s84, s84, s88")
    A(f"s_add_u32 s84, s84, {WS_SP}")
    A(f"ds_write_b128 v14, v[{AC}:{AC+3}] offset:{L_S}")
    A("s_waitcnt lgkmcnt(0)"); A("s_barrier")
    A("ds_read2_b32 v[10:11], v12 offset0:0 offset1:160")
    A("s_mov_b32 s88, 0x11111111"); A("s_mov_b32 s89, 0x11111111")
    A("s_waitcnt lgkmcnt(0)")
    A("v_add_f32 v10, v10, v11")
    A("v_mov_b32 v11, s58")
    for m in D8[:2]: A(f"v_add_f32_dpp v10, v10, v10 {m}")
    A("s_mov_b64 exec, s[88:89]")
    A("buffer_store_dwordx2 v[10:11], v13, s[52:55], s84 offen sc1")
    A("s_mov_b64 exec, -1")
    stamp(7)
    A("s_mov_b32 s65, s85"); A("s_mov_b32 s64, 0")
    A("s_cmp_lg_u32 s3, 0"); A("s_cbranch_scc1 L_kvend")
    A("s_lshl_b32 s84, s4, 7"); A("s_lshl_b32 s88, s5, 2"); A("s_add_u32 s84, s84, s88")
    A("s_load_dword s60, s[8:9], s84"); A("s_load_dword s61, s[26:27], 0")
    A("v_and_b32 v1, 31, v0"); A("v_lshlrev_b32 v1, 12, v1")
    A("s_lshl_b32 s85, s84, 2"); A(f"s_add_u32 s85, s85, {WS_SP}")
    A("v_mov_b32 v2, 0")
    A(f"ds_read_b64 v[16:17], v2 offset:{L_Y}"); A(f"ds_read_b64 v[18:19], v2 offset:{L_Y+8}"); A(f"ds_read_b64 v[20:21], v2 offset:{L_Y+16}")
    A("buffer_load_dwordx4 v[24:27], v1, s[52:55], s85 offen sc1")
    srd_const(48, 1024); srd(48, 28, 0)
    A("s_waitcnt lgkmcnt(0)")
    A("v_add_f32 v16, v16, v18"); A("v_add_f32 v17, v17, v19"); A("v_add_f32 v16, v16, v20"); A("v_add_f32 v17, v17, v21")
    A("v_cvt_pk_bf16_f32 v18, v16, v17"); unpack(16, 17, 18)
    A("s_lshl_b32 s61, s61, 16")
    A("v_add_f32 v16, s61, v16"); A("v_add_f32 v17, s61, v17")
    A("v_cvt_pk_bf16_f32 v18, v16, v17"); unpack(16, 17, 18)
    A(f"v_mul_f32 v18, {hx(f2u(-LOG2E))}, v16"); A(f"v_mul_f32 v19, {hx(f2u(-LOG2E))}, v17")
    A("v_exp_f32 v18, v18"); A("v_exp_f32 v19, v19")
    A("v_add_f32 v18, 1.0, v18"); A("v_add_f32 v19, 1.0, v19")
    A("v_rcp_f32 v18, v18"); A("v_rcp_f32 v19, v19")
    A("v_mul_f32 v16, v16, v18"); A("v_mul_f32 v17, v17, v19")
    A("v_cvt_pk_bf16_f32 v18, v16, v17"); unpack(16, 17, 18)
    A("s_lshl_b32 s62, s60, 16"); A("s_and_b32 s63, s60, 0xffff0000")
    A("s_mov_b32 s64, 0")
    A("s_branch L_fcheck")
    A.label("L_fpoll")
    A("buffer_load_dwordx4 v[24:27], v1, s[52:55], s85 offen sc1")
    A.label("L_fcheck")
    A("s_add_u32 s64, s64, 1")
    A("s_waitcnt vmcnt(0)")
    A("v_cmp_ne_u32 vcc, s58, v25"); A("v_cmp_ne_u32 s[88:89], s58, v27")
    A("s_or_b64 vcc, vcc, s[88:89]")
    A(f"s_cmp_gt_u32 s64, {SPIN_MAX}"); A("s_cbranch_scc1 L_fgo")
    A("s_cbranch_vccnz L_fpoll")
    A.label("L_fgo")
    stamp(8)
    for m in D8 + ("row_mirror row_mask:0xf bank_mask:0xf", "row_bcast:15 row_mask:0xa bank_mask:0xf"):
        A(f"v_add_f32_dpp v24, v24, v24 {m}"); A(f"v_add_f32_dpp v26, v26, v26 {m}")
    A("v_cvt_pk_bf16_f32 v18, v24, v26"); unpack(24, 26, 18)
    A("v_mul_f32 v24, v24, v16"); A("v_mul_f32 v26, v26, v17")
    A("v_cvt_pk_bf16_f32 v18, v24, v26"); unpack(24, 26, 18)
    A("v_add_f32 v24, s62, v24"); A("v_add_f32 v26, s63, v26")
    A("v_cvt_pk_bf16_f32 v18, v24, v26")
    A("s_mov_b32 exec_lo, 0x80000000"); A("s_mov_b32 exec_hi, 0")
    A("buffer_store_dword v18, v2, s[48:51], s84 offen")
    A("s_cmp_lg_u32 s2, 0"); A("s_cbranch_scc1 L_noep")
    A("v_mov_b32 v11, s58")
    A("buffer_store_dword v11, v2, s[52:55], 0 offen sc1")
    A.label("L_noep")
    A("s_mov_b64 exec, -1")
    A.label("L_kvend")
    if stamps:
        A.label("L_dump")
        A("s_memrealtime s[96:97]"); A("s_memtime s[90:91]"); A("s_waitcnt lgkmcnt(0)")
        A("v_writelane_b32 v15, s90, 15"); A("v_writelane_b32 v15, s92, 16"); A("v_writelane_b32 v15, s96, 17"); A("v_writelane_b32 v15, s94, 18")
        A("v_writelane_b32 v15, s65, 19"); A("v_writelane_b32 v15, s64, 20")
        A("s_lshl_b32 s90, s2, 3"); A("s_add_u32 s90, s90, s3"); A("s_lshl_b32 s90, s90, 8"); A(f"s_add_u32 s90, s90, {WS_TS}")
        A("v_lshlrev_b32 v1, 2, v0")
        A("buffer_store_dword v15, v1, s[52:55], s90 offen")
    A.label("L_end")
    A("s_endpgm")

    A.label("L_aux")
    srd_const(36, 1024)
    X4 = 16; XF = 20
    A("s_cmp_lg_u32 s3, 4"); A("s_cbranch_scc1 L_bwave")
    srd_const(40, 4194304)
    XR = 28; WQ = 64; AQ = 40; SELQ = 56; DQ = 36
    A("v_lshlrev_b32 v4, 17, v5"); A("v_lshl_add_u32 v4, v6, 4, v4")
    A("s_lshl_b32 s60, s6, 20"); A("s_lshl_b32 s61, s4, 10"); A("s_add_u32 s60, s60, s61")
    A("s_lshl_b32 s61, s7, 7"); A("s_add_u32 s60, s60, s61")
    for i in range(1, 16): A(f"s_add_u32 s{60+i}, s60, {i*8192}")
    A("v_lshlrev_b32 v7, 5, v5"); A("s_lshl_b32 s76, s6, 8")
    A("s_waitcnt lgkmcnt(0)")
    srd(36, 8, 0); srd(40, 14, 0)
    A(f"buffer_load_dwordx4 v[{X4}:{X4+3}], v3, s[36:39], 0 offen")
    A(f"buffer_load_dwordx4 v[{XR}:{XR+3}], v7, s[36:39], s76 offen")
    A(f"buffer_load_dwordx4 v[{XR+4}:{XR+7}], v7, s[36:39], s76 offen offset:16")
    for i in range(16):
        A(f"buffer_load_dwordx4 v[{WQ+4*i}:{WQ+4*i+3}], v4, s[40:43], s{60+i} offen nt")
    A("s_barrier")
    stamp(0)
    srd(52, 32, 0)
    A("s_load_dword s56, s[32:33], 0")
    make_sel(SELQ, 8)
    A("v_bfe_u32 v1, v0, 4, 1"); A("v_lshlrev_b32 v12, 5, v6"); A("v_lshl_add_u32 v12, v1, 4, v12")
    A("s_lshl_b32 s80, s4, 13"); A("s_lshl_b32 s81, s6, 11"); A("s_add_u32 s80, s80, s81"); A("s_lshl_b32 s81, s7, 8"); A("s_add_u32 s80, s80, s81")
    A(f"s_add_u32 s81, s80, {WS_QB}"); A(f"s_add_u32 s80, s80, {WS_QA}")
    A("s_waitcnt vmcnt(18)")
    stamp(1)
    for p in range(4): unpack(XF + 2 * p, XF + 2 * p + 1, X4 + p)
    ln_stats(XF, 8, 82, 83, 84)
    A("s_waitcnt vmcnt(16)")
    for p in range(8):
        unpack(8, 9, XR + p)
        normalize_pair(XR + p, 8, 9, 82, 83)
    stamp(2)
    for i in range(16):
        a = AQ + 4 * (i & 3)
        for d in range(4):
            A(f"v_perm_b32 v{a+d}, v{XR+i//2}, v{XR+i//2}, v{SELQ+2*d+(i&1)}")
        A(f"s_waitcnt vmcnt({15-i})")
        c = "0" if i == 0 else f"v[{DQ}:{DQ+3}]"
        A(f"v_mfma_f32_16x16x32_bf16 v[{DQ}:{DQ+3}], v[{a}:{a+3}], v[{WQ+4*i}:{WQ+4*i+3}], {c}")
    A("s_waitcnt lgkmcnt(0)")
    A("s_add_u32 s58, s56, 1"); A("s_and_b32 s57, s58, s59"); A("v_mov_b32 v9, s57")
    for r in range(4): A(f"v_mov_b32 v{AQ+r}, v{DQ+r}")
    for r in range(4): A(f"v_permlane32_swap_b32 v{DQ+r}, v{AQ+r}")
    for r in range(4): A(f"v_add_f32_dpp v{DQ+r}, v{AQ+r}, v{DQ+r} row_ror:8 row_mask:0xf bank_mask:0xf")
    for r in range(4): A(f"v_bfi_b32 v{DQ+r}, s59, v9, v{DQ+r}")
    A("s_mov_b32 exec_lo, 0x00ff00ff"); A("s_mov_b32 exec_hi, 0")
    A(f"buffer_store_dwordx4 v[{DQ}:{DQ+3}], v12, s[52:55], s80 offen")
    A(f"buffer_store_dwordx4 v[{DQ}:{DQ+3}], v12, s[52:55], s81 offen sc1")
    A("s_mov_b64 exec, -1")
    stamp(3)
    A("s_branch L_gather")

    A.label("L_bwave")
    srd_const(40, 3584); srd_const(44, 3584); srd_const(48, 3584)
    W1 = 32; B1 = 40; W2 = 48
    A("s_sub_u32 s60, s3, 5"); A("s_lshl_b32 s60, s60, 6"); A("v_add_u32 v4, s60, v0"); A("v_mul_u32_u24 v4, 20, v4")
    A("s_lshl_b32 s84, s4, 7"); A("s_lshl_b32 s85, s5, 2"); A("s_add_u32 s84, s84, s85")
    A("s_waitcnt lgkmcnt(0)")
    srd(36, 8, 0); srd(40, 20, 0); srd(44, 22, 0); srd(48, 24, 0)
    A(f"buffer_load_dwordx4 v[{X4}:{X4+3}], v3, s[36:39], 0 offen")
    for (r, sr) in ((W1, 40), (B1, 44), (W2, 48)):
        A(f"buffer_load_dwordx4 v[{r}:{r+3}], v4, s[{sr}:{sr+3}], 0 offen")
        A(f"buffer_load_dword v{r+4}, v4, s[{sr}:{sr+3}], 0 offen offset:16")
    A("s_barrier")
    stamp(0)
    srd(52, 32, 0)
    A("s_load_dword s56, s[32:33], 0")
    A("s_load_dword s60, s[8:9], s84")
    A("s_waitcnt vmcnt(6)")
    stamp(1)
    for p in range(4): unpack(XF + 2 * p, XF + 2 * p + 1, X4 + p)
    ln_stats(XF, 8, 82, 83, 84)
    for p in range(4):
        normalize_pair(X4 + p, XF + 2 * p, XF + 2 * p + 1, 82, 83)
        unpack(XF + 2 * p, XF + 2 * p + 1, X4 + p)
    ln_stats(XF, 8, 86, 87, 84)
    A("s_waitcnt lgkmcnt(0)")
    A("s_add_u32 s58, s56, 1"); A("s_and_b32 s57, s58, s59")
    A("v_mov_b32 v10, s60"); unpack(8, 9, 10)
    normalize_pair(10, 8, 9, 82, 83); unpack(8, 9, 10)
    normalize_pair(10, 8, 9, 86, 87); unpack(8, 9, 10)
    A(f"v_mov_b32 v14, {hx(f2u(C1))}")
    A("v_mov_b32 v12, 0"); A("v_mov_b32 v13, 0")
    stamp(2)
    A("s_waitcnt vmcnt(0)")
    for p in range(5):
        unpack(56, 57, W1 + p); unpack(58, 59, B1 + p); unpack(60, 61, W2 + p)
        for col in range(2):
            a, b, t = 62 + 8 * col, 63 + 8 * col, 64 + 8 * col
            A(f"v_mul_f32 v{a}, v{8+col}, v56"); A(f"v_mul_f32 v{b}, v{8+col}, v57")
            A(f"v_cvt_pk_bf16_f32 v{t}, v{a}, v{b}"); unpack(a, b, t)
            A(f"v_add_f32 v{a}, v{a}, v58"); A(f"v_add_f32 v{b}, v{b}, v59")
            A(f"v_cvt_pk_bf16_f32 v{t}, v{a}, v{b}"); unpack(a, b, t)
            A(f"v_mul_f32 v{t}, v{a}, v{a}"); A(f"v_mul_f32 v{t+1}, v{b}, v{b}")
            A(f"v_fmaak_f32 v{t}, v14, v{t}, {hx(f2u(C0))}"); A(f"v_fmaak_f32 v{t+1}, v14, v{t+1}, {hx(f2u(C0))}")
            A(f"v_mul_f32 v{t}, v{t}, v{a}"); A(f"v_mul_f32 v{t+1}, v{t+1}, v{b}")
            A(f"v_exp_f32 v{t}, v{t}"); A(f"v_exp_f32 v{t+1}, v{t+1}")
            A(f"v_add_f32 v{t}, 1.0, v{t}"); A(f"v_add_f32 v{t+1}, 1.0, v{t+1}")
            A(f"v_rcp_f32 v{t}, v{t}"); A(f"v_rcp_f32 v{t+1}, v{t+1}")
            A(f"v_mul_f32 v{a}, v{a}, v{t}"); A(f"v_mul_f32 v{b}, v{b}, v{t+1}")
            A(f"v_cvt_pk_bf16_f32 v{t}, v{a}, v{b}"); unpack(a, b, t)
            A(f"v_fmac_f32 v{12+col}, v{a}, v60"); A(f"v_fmac_f32 v{12+col}, v{b}, v61")
    for m in ("quad_perm:[1,0,3,2] row_mask:0xf bank_mask:0xf", "quad_perm:[2,3,0,1] row_mask:0xf bank_mask:0xf",
              "row_half_mirror row_mask:0xf bank_mask:0xf", "row_mirror row_mask:0xf bank_mask:0xf",
              "row_bcast:15 row_mask:0xa bank_mask:0xf", "row_bcast:31 row_mask:0xc bank_mask:0xf"):
        A(f"v_add_f32_dpp v12, v12, v12 {m}"); A(f"v_add_f32_dpp v13, v13, v13 {m}")
    A("s_sub_u32 s60, s3, 5"); A("s_lshl_b32 s60, s60, 3"); A("v_mov_b32 v1, s60")
    A("s_mov_b32 exec_lo, 0"); A("s_mov_b32 exec_hi, 0x80000000")
    A(f"ds_write_b64 v1, v[12:13] offset:{L_Y}")
    A("s_mov_b64 exec, -1")
    stamp(3)

    A.label("L_gather")
    A("v_lshrrev_b32 v1, 5, v0"); A("v_lshlrev_b32 v1, 11, v1"); A("v_and_b32 v2, 31, v0"); A("v_lshl_add_u32 v1, v2, 4, v1")
    A("s_sub_u32 s61, s3, 4")
    A("s_lshl_b32 s60, s4, 13"); A("s_lshl_b32 s62, s61, 9"); A("s_add_u32 s60, s60, s62")
    A("s_lshl_b32 s62, s61, 8"); A("v_lshlrev_b32 v2, 3, v2"); A("v_add_u32 v2, s62, v2")
    A("v_add_u32 v4, 4096, v1")
    A("s_mov_b32 s85, 0"); A(f"s_add_u32 s60, s60, {WS_QA}"); A("s_mov_b32 s86, s60")
    A.label("L_qpoll")
    A("buffer_load_dwordx4 v[16:19], v1, s[52:55], s86 offen sc1")
    A("buffer_load_dwordx4 v[20:23], v4, s[52:55], s86 offen sc1")
    A("s_add_u32 s85, s85, 1")
    A("s_and_b32 s88, s85, 3"); A("s_cmp_eq_u32 s88, 3")
    A(f"s_cselect_b32 s88, {BD}, 0"); A("s_add_u32 s86, s60, s88")
    A("s_waitcnt vmcnt(0)")
    for q in range(8): A(f"v_xor_b32 v{16+q}, s57, v{16+q}")
    A("v_or3_b32 v9, v16, v17, v18"); A("v_or3_b32 v9, v9, v19, v20"); A("v_or3_b32 v9, v9, v21, v22"); A("v_or_b32 v9, v9, v23")
    A("v_and_b32 v9, s59, v9")
    A("v_cmp_ne_u32 vcc, 0, v9")
    A(f"s_cmp_gt_u32 s85, {SPIN_MAX}"); A("s_cbranch_scc1 L_qgo")
    A("s_cbranch_vccnz L_qpoll")
    A.label("L_qgo")
    stamp(4)
    for r in range(4): A(f"v_add_f32 v{16+r}, v{16+r}, v{20+r}")
    for r in range(4): A(f"v_mov_b32 v{20+r}, v{16+r}")
    for r in range(4): A(f"v_permlane32_swap_b32 v{16+r}, v{20+r}")
    for r in range(4): A(f"v_add_f32 v{16+r}, v{16+r}, v{20+r}")
    A("v_cvt_pk_bf16_f32 v16, v16, v17"); A("v_cvt_pk_bf16_f32 v17, v18, v19")
    A(f"ds_write_b64 v2, v[16:17] offset:{L_Q}")
    A("s_waitcnt lgkmcnt(0)")
    A("s_barrier")
    if stamps:
        A("s_mov_b32 s65, s85"); A("s_mov_b32 s64, 0")
        A("s_branch L_dump")
    A("s_endpgm")

    body = A.finalize()
    txt = HEADER + f"; @launch grid=(256,1,1) block=(512,1,1) lds={LDS_BYTES}\n" + body
    txt += f""".section .rodata,"a"
.p2align 6
.amdhsa_kernel {KNAME}
  .amdhsa_next_free_vgpr 128
  .amdhsa_next_free_sgpr 102
  .amdhsa_accum_offset 128
  .amdhsa_group_segment_fixed_size 0
  .amdhsa_kernarg_size 104
  .amdhsa_user_sgpr_count 2
  .amdhsa_user_sgpr_kernarg_segment_ptr 1
  .amdhsa_system_sgpr_workgroup_id_x 1
.end_amdhsa_kernel
"""
    open(path, "w").write(txt)

if __name__ == "__main__":
    gen("k1.s", stamps=False)
    gen("k1s.s", stamps=True)
```
